```python
import torch

def _softmax(x, axis=-1):
    return torch.softmax(x, dim=axis)
def _gelu(x):
    return torch.nn.functional.gelu(x, approximate="tanh")
def _silu(x):
    return torch.nn.functional.silu(x)
def _sigmoid(x):
    return torch.sigmoid(x)
def _layernorm(x, axis=-1, eps=1e-5):
    m = x.mean(dim=axis, keepdim=True)
    v = x.var(dim=axis, keepdim=True, unbiased=False)
    return (x - m) / torch.sqrt(v + eps)
def _scatter_add(tgt, idx, src, axis=0):
    return tgt.clone().index_add_(axis, idx, src)
def _segment_sum(src, seg, n):
    out = torch.zeros((n,) + src.shape[1:], dtype=src.dtype)
    return out.index_add_(0, seg, src)
def _pad(x, pw):
    flat = tuple(v for pair in reversed(pw) for v in pair)
    return torch.nn.functional.pad(x, flat)

kernel_name = 'concat_heads__mha_block_cached__gqa_block_cached__near_ridge'

def setup_inputs():

    _w = (lambda a: (lambda t: t.to(torch.bfloat16) if t.is_floating_point() else t)(torch.as_tensor(a)))
    def _A_setup():
        B, Sq, D = 8, 112, 512
        H, Sk, Dh = 32, 512, 128
        return {
            "x": _w((lambda *s: torch.randn(*s, dtype=torch.bfloat16) * 0.8)(B, Sq, D)),
            "k_cache": _w((lambda *s: torch.randn(*s, dtype=torch.bfloat16) * 0.8)(B, H, Sk, Dh)),
            "v_cache": _w((lambda *s: torch.randn(*s, dtype=torch.bfloat16) * 0.05)(B, H, Sk, Dh)),
            "wq": _w((lambda *s: torch.randn(*s, dtype=torch.bfloat16) * 0.8)(D, H * Dh) * (D ** -0.5)),
            "wo": _w((lambda *s: torch.randn(*s, dtype=torch.bfloat16) * 0.05)(H * Dh, D) * ((H * Dh) ** -0.5)),
        }
    _A_in = _A_setup()

    def _B_setup():
        B, Sq, D = 8, 112, 512
        Hq, Hkv, Sk, Dh = 32, 32, 512, 128
        assert Hq % Hkv == 0, (Hq, Hkv)
        return {
            "x": _w((lambda *s: torch.randn(*s, dtype=torch.bfloat16) * 0.8)(B, Sq, D)),
            "k_cache": _w((lambda *s: torch.randn(*s, dtype=torch.bfloat16) * 0.8)(B, Hkv, Sk, Dh)),
            "v_cache": _w((lambda *s: torch.randn(*s, dtype=torch.bfloat16) * 0.05)(B, Hkv, Sk, Dh)),
            "wq": _w((lambda *s: torch.randn(*s, dtype=torch.bfloat16) * 0.8)(D, Hq * Dh) * (D ** -0.5)),
            "wo": _w((lambda *s: torch.randn(*s, dtype=torch.bfloat16) * 0.05)(Hq * Dh, D) * ((Hq * Dh) ** -0.5)),
        }
    _B_in = _B_setup()

    return {
        "A_x": _A_in["x"],
        "A_k_cache": _A_in["k_cache"],
        "A_v_cache": _A_in["v_cache"],
        "A_wq": _A_in["wq"],
        "A_wo": _A_in["wo"],
        "B_x": _B_in["x"],
        "B_k_cache": _B_in["k_cache"],
        "B_v_cache": _B_in["v_cache"],
        "B_wq": _B_in["wq"],
        "B_wo": _B_in["wo"],
    }

def reference(A_x, A_k_cache, A_v_cache, A_wq, A_wo, B_x, B_k_cache, B_v_cache, B_wq, B_wo):
    def _A_ref(x, k_cache, v_cache, wq, wo):
        B, Sq, D = x.shape
        H, Dh = 32, 128
        q = (lambda x, *d: x.permute(*d))((x @ wq).reshape(B, Sq, H, Dh), 0, 2, 1, 3)
        scores = torch.einsum("bhqd,bhkd->bhqk", q, k_cache) * (Dh ** -0.5)
        p = _softmax(scores, axis=-1)
        o = torch.einsum("bhqk,bhkd->bhqd", p, v_cache)
        return (lambda x, *d: x.permute(*d))(o, 0, 2, 1, 3).reshape(B, Sq, H * Dh) @ wo

    def _B_ref(x, k_cache, v_cache, wq, wo):
        B, Sq, D = x.shape
        Hq, Dh = 32, 128
        Hkv = k_cache.shape[1]
        rep = Hq // Hkv
        q = (lambda x, *d: x.permute(*d))((x @ wq).reshape(B, Sq, Hq, Dh), 0, 2, 1, 3)
        k = (lambda x, n, axis: torch.repeat_interleave(x, n, dim=axis))(k_cache, rep, axis=1)
        v = (lambda x, n, axis: torch.repeat_interleave(x, n, dim=axis))(v_cache, rep, axis=1)
        scores = torch.einsum("bhqd,bhkd->bhqk", q, k) * (Dh ** -0.5)
        p = _softmax(scores, axis=-1)
        o = torch.einsum("bhqk,bhkd->bhqd", p, v)
        return (lambda x, *d: x.permute(*d))(o, 0, 2, 1, 3).reshape(B, Sq, Hq * Dh) @ wo

    a = _A_ref(A_x, A_k_cache, A_v_cache, A_wq, A_wo)
    b = _B_ref(B_x, B_k_cache, B_v_cache, B_wq, B_wo)
    return torch.concatenate([a, b], axis=-1)
```

```python
import re


def R(base, n=1):
    return list(range(base, base + n))


def vr(regs):
    if isinstance(regs, int):
        return f"v{regs}"
    if len(regs) == 1:
        return f"v{regs[0]}"
    assert regs == list(range(regs[0], regs[0] + len(regs))), regs
    return f"v[{regs[0]}:{regs[-1]}]"


def sr(base, n=1):
    if n == 1:
        return f"s{base}"
    return f"s[{base}:{base + n - 1}]"


class Asm:
    def __init__(self):
        self.lines = []
        self.pos = 0
        self.valu_w = {}
        self.trans_w = {}
        self.mfma_w = {}
        self.mfma_c = {}
        self.store_r = {}
        self.m0_w = -100
        self.sgpr_valu_w = {}
        self.ninstr = 0

    def raw(self, text, states=1):
        self.lines.append("    " + text)
        self.pos += states
        self.ninstr += 1

    def comment(self, text):
        self.lines.append("    ; " + text)

    def label(self, name):
        self.lines.append(f"{name}:")

    def fence(self):
        self.nop(8)

    def nop(self, n):
        while n > 0:
            k = min(n, 8)
            self.raw(f"s_nop {k - 1}", k)
            n -= k

    def _need(self, last_pos, ws):
        have = self.pos - last_pos - 1
        return max(0, ws - have)

    def _pad(self, n):
        if n > 0:
            self.nop(n)

    def mfma(self, D, A, B, C=None, op="v_mfma_f32_16x16x32_bf16"):
        need = 0
        for r in A + B + (C or []):
            if r in self.valu_w:
                need = max(need, self._need(self.valu_w[r], 2))
        for r in A + B:
            if r in self.mfma_w:
                need = max(need, self._need(self.mfma_w[r][0], 8))
        if C:
            for r in C:
                if r in self.mfma_w and self.mfma_w[r][1] != tuple(C):
                    need = max(need, self._need(self.mfma_w[r][0], 6))
        for r in D:
            if r in self.mfma_w and self.mfma_w[r][1] != tuple(D):
                need = max(need, self._need(self.mfma_w[r][0], 8))
            elif r in self.mfma_w and not C:
                need = max(need, self._need(self.mfma_w[r][0], 8))
        self._pad(need)
        c = vr(C) if C else "0"
        p = self.pos
        self.raw(f"{op} {vr(D)}, {vr(A)}, {vr(B)}, {c}")
        for r in D:
            self.mfma_w[r] = (p, tuple(D))
            self.valu_w.pop(r, None)
        if C:
            for r in C:
                self.mfma_c[r] = p

    def _valu_pre(self, dst, src, trans=False, permlane=False, readlane=False):
        need = 0
        for r in src:
            if r in self.mfma_w:
                need = max(need, self._need(self.mfma_w[r][0], 8))
            if r in self.trans_w and not trans:
                need = max(need, self._need(self.trans_w[r], 1))
            if permlane and r in self.valu_w:
                need = max(need, self._need(self.valu_w[r], 2))
            if readlane and r in self.valu_w:
                need = max(need, self._need(self.valu_w[r], 1))
        for r in dst:
            if r in self.mfma_w:
                need = max(need, self._need(self.mfma_w[r][0], 8))
            if r in self.mfma_c:
                need = max(need, self._need(self.mfma_c[r], 3))
            if r in self.store_r:
                need = max(need, self._need(self.store_r[r], 2))
        self._pad(need)

    def valu(self, text, dst, src, trans=False, permlane=False, readlane=False, sdst=None, ssrc=()):
        dst = [dst] if isinstance(dst, int) else list(dst)
        src = [src] if isinstance(src, int) else list(src)
        need = 0
        for s in ssrc:
            if s in self.sgpr_valu_w:
                need = max(need, self._need(self.sgpr_valu_w[s], 2))
        self._pad(need)
        self._valu_pre(dst, src, trans, permlane, readlane)
        p = self.pos
        self.raw(text)
        for r in dst:
            self.valu_w[r] = p
            self.mfma_w.pop(r, None)
            if trans:
                self.trans_w[r] = p
            else:
                self.trans_w.pop(r, None)
        if sdst is not None:
            self.sgpr_valu_w[sdst] = p

    def mem(self, text, dst=(), src=(), wide_store=False, ssrc=(), ldsdma=False):
        need = 0
        for r in list(src) + list(dst):
            if r in self.mfma_w:
                need = max(need, self._need(self.mfma_w[r][0], 8))
        for r in dst:
            if r in self.store_r:
                need = max(need, self._need(self.store_r[r], 1))
        for s in ssrc:
            if s in self.sgpr_valu_w:
                need = max(need, self._need(self.sgpr_valu_w[s], 5))
        if ldsdma:
            need = max(need, self._need(self.m0_w, 1))
        self._pad(need)
        p = self.pos
        self.raw(text)
        for r in dst:
            self.mfma_w.pop(r, None)
            self.valu_w.pop(r, None)
            self.trans_w.pop(r, None)
        if wide_store:
            for r in src:
                self.store_r[r] = p

    def salu(self, text, m0=False):
        p = self.pos
        self.raw(text)
        if m0:
            self.m0_w = p

    def v(self, op, dst, *srcs, trans=False):
        ops = []
        rs = []
        ss = []
        for s in srcs:
            if isinstance(s, int):
                ops.append(f"v{s}")
                rs.append(s)
            else:
                ops.append(str(s))
                m = re.match(r"^-?s(\d+)$", str(s))
                if m:
                    ss.append(int(m.group(1)))
                m = re.match(r"^-v(\d+)$", str(s))
                if m:
                    rs.append(int(m.group(1)))
        self.valu(f"{op} v{dst}, " + ", ".join(ops), [dst], rs, trans=trans, ssrc=ss)

    def permswap(self, which, a, b):
        self.valu(f"v_permlane{which}_swap_b32 v{a}, v{b}", [a, b], [a, b], permlane=True)

    def readfirstlane(self, s, v):
        self.valu(f"v_readfirstlane_b32 s{s}, v{v}", [], [v], readlane=True, sdst=s)

    def waitcnt(self, vm=None, lgkm=None):
        parts = []
        if vm is not None:
            parts.append(f"vmcnt({vm})")
        if lgkm is not None:
            parts.append(f"lgkmcnt({lgkm})")
        self.raw("s_waitcnt " + " ".join(parts))

    def barrier(self):
        self.raw("s_barrier")

    def text(self):
        return "\n".join(self.lines) + "\n"
```

```python
import sys, math, struct
from asmlib import Asm, R, vr

KN = "concat_heads__mha_block_cached__gqa_block_cached__near_ridge_kernel"

OPT = dict(nslots=8, D=4, nt=False)
for arg in sys.argv[2:]:
    k, v = arg.split("=")
    OPT[k] = int(v)

NSLOTS = OPT["nslots"]
LOOK = OPT["D"]

S_K, S_V, S_WQ, S_X, S_WS, S_WO, S_OUT = 4, 8, 12, 16, 20, 24, 28
sWAVE, sB, sBLK, sHH, sM = 32, 33, 34, 35, 62
sKV = [64, 65]
sW = [66, 67]
sXO = 68
sOO = [69, 70]
sT = 71
sC = 72
sT2 = 73


def srd(b):
    return f"s[{b}:{b + 3}]"


vXO, vOO, vM = 1, 2, 3
RS = R(4, 4)
vK = R(8, 4)
vV = R(12, 8)
ONES = R(20, 4)
XF = [R(24, 4), R(28, 4)]
F = [R(32 + 4 * i, 4) for i in range(8)]
GACC = [R(64 + 4 * i, 4) for i in range(8)]
OACC = [R(96 + 4 * i, 4) for i in range(8)]
QF = [R(96 + 4 * i, 4) for i in range(4)]
SB = 128
ST = [R(SB + 4 * i, 4) for i in range(32)]

CSCALE = (128 ** -0.5) * math.log2(math.e)


def f32hex(x):
    return "0x%08x" % struct.unpack("<I", struct.pack("<f", x))[0]


WS_O_BYTES = 2 * 8 * 112 * 4096 * 2
WS_P_OFF = 16 * 1024 * 1024
WS_SIZE = 268435456


def common_prologue(a, nwg, endlabel):
    a.salu(f"s_cmp_ge_u32 s2, {nwg}")
    a.salu(f"s_cbranch_scc1 {endlabel}")
    a.salu("s_load_dwordx8 s[36:43], s[0:1], 0")
    a.salu("s_load_dwordx8 s[44:51], s[0:1], 32")
    a.salu("s_load_dwordx8 s[52:59], s[0:1], 64")
    a.salu("s_load_dwordx2 s[60:61], s[0:1], 96")
    a.v("v_lshrrev_b32", 1, "6", 0)
    a.readfirstlane(sWAVE, 1)
    a.v("v_and_b32", 0, "63", 0)
    a.salu("s_and_b32 s74, s2, 7")
    a.salu("s_lshr_b32 s75, s2, 3")
    a.salu(f"s_and_b32 s{sB}, s75, 7")
    a.salu(f"s_lshr_b32 s{sM}, s75, 3")
    a.salu("s_lshl_b32 s76, s74, 2")
    a.salu(f"s_add_u32 s76, s76, s{sM}")
    a.salu(f"s_lshr_b32 s{sBLK}, s76, 4")
    a.salu(f"s_and_b32 s{sHH}, s76, 15")
    a.waitcnt(lgkm=0)
    a.salu(f"s_cmp_eq_u32 s{sBLK}, 0")
    for dst, pa, pb, size in ((S_X, 36, 46, 917504), (S_K, 38, 48, 33554432), (S_V, 40, 50, 33554432),
                              (S_WQ, 42, 52, 4194304), (S_WO, 44, 54, 4194304)):
        a.salu(f"s_cselect_b32 s{dst}, s{pa}, s{pb}")
        a.salu(f"s_cselect_b32 s{dst + 1}, s{pa + 1}, s{pb + 1}")
        a.salu(f"s_mov_b32 s{dst + 2}, {size}")
        a.salu(f"s_mov_b32 s{dst + 3}, 0x20000")
    for dst, p, size in ((S_WS, 60, WS_SIZE), (S_OUT, 56, 1835008)):
        a.salu(f"s_mov_b32 s{dst}, s{p}")
        a.salu(f"s_mov_b32 s{dst + 1}, s{p + 1}")
        a.salu(f"s_mov_b32 s{dst + 2}, {size}")
        a.salu(f"s_mov_b32 s{dst + 3}, 0x20000")


LvE, LvO, LvWE, LvWO = 2, 3, 4, 5


def loader_setup(a, wstride):
    a.v("v_lshrrev_b32", 6, "4", 0)
    a.v("v_and_b32", 7, "15", 0)
    a.v("v_lshlrev_b32", 8, "1", 6)
    a.v("v_xor_b32", 9, 7, 8)
    a.v("v_xor_b32", 10, "8", 9)
    a.v("v_lshlrev_b32", 9, "4", 9)
    a.v("v_lshlrev_b32", 10, "4", 10)
    a.v("v_lshlrev_b32", 11, "8", 6)
    a.v("v_add_u32", LvE, 9, 11)
    a.v("v_add_u32", LvO, 10, 11)
    a.v("v_mul_u32_u24", 11, str(wstride), 6)
    a.v("v_add_u32", LvWE, 9, 11)
    a.v("v_add_u32", LvWO, 10, 11)


def emit_tile_load(a, tile, slot):
    typ = tile[0]
    nt = " nt" if OPT["nt"] else ""
    if typ in "KV":
        _, it, j = tile
        sd = srd(S_K if typ == "K" else S_V)
        for q in range(4):
            a.salu(f"s_mov_b32 m0, {slot * 16384 + q * 4096}", m0=True)
            a.salu(f"s_add_u32 s{sT}, s{sKV[it]}, {j * 16384 + q * 4096}")
            for ii in range(4):
                i = q * 4 + ii
                a.mem(f"buffer_load_dwordx4 v{LvE if i % 2 == 0 else LvO}, {sd}, s{sT} offen offset:{1024 * ii} lds{nt}",
                      src=[LvE, LvO], ldsdma=True)
    else:
        _, sd, sbase, rs, row0 = tile
        for i in range(16):
            if i % 4 == 0:
                a.salu(f"s_mov_b32 m0, {slot * 16384 + (i // 4) * 4096}", m0=True)
            grow = row0 + 32 * (i >> 3) + 8 * (i & 3) + 4 * ((i >> 2) & 1)
            a.salu(f"s_add_u32 s{sT}, s{sbase}, {grow * rs - 1024 * (i & 3)}")
            a.mem(f"buffer_load_dwordx4 v{LvWE if i % 2 == 0 else LvWO}, {srd(sd)}, s{sT} offen offset:{1024 * (i & 3)} lds",
                  src=[LvWE, LvWO], ldsdma=True)


def emit_loader(a, tiles):
    n = len(tiles)
    for t in range(min(LOOK, n)):
        emit_tile_load(a, tiles[t], t % NSLOTS)
    for s in range(n):
        issued = min(n, s + LOOK)
        after = issued - (s + 1)
        a.waitcnt(vm=min(63, 16 * after))
        a.barrier()
        if s + LOOK < n:
            emit_tile_load(a, tiles[s + LOOK], (s + LOOK) % NSLOTS)


class Ctx:
    def __init__(self):
        self.reg = {"K": 0, "V": 0}


def ensure_region(a, ctx, typ, slot):
    want = slot // 4
    cur = ctx.reg[typ]
    if want != cur:
        regs = vK if typ == "K" else vV
        delta = (want - cur) * 65536
        for r in regs:
            a.v("v_add_u32", r, str(delta) if delta > 0 else hex(delta & 0xffffffff), r)
        ctx.reg[typ] = want
    return (slot % 4) * 16384


def compute_setup(a, need_k=True):
    a.v("v_and_b32", 32, "15", 0)
    a.v("v_lshrrev_b32", 33, "4", 0)
    if need_k:
        a.v("v_and_b32", 34, "7", 32)
        a.v("v_lshlrev_b32", 34, "1", 34)
        a.v("v_xor_b32", 34, 33, 34)
        a.v("v_lshlrev_b32", 34, "4", 34)
        a.v("v_lshlrev_b32", 35, "8", 32)
        a.v("v_add_u32", vK[0], 34, 35)
        for ds in range(1, 4):
            a.v("v_xor_b32", vK[ds], str(ds << 6), vK[0])
    a.v("v_lshrrev_b32", 34, "2", 0)
    a.v("v_lshlrev_b32", 35, "8", 34)
    a.v("v_and_b32", 34, "7", 34)
    a.v("v_lshlrev_b32", 34, "5", 34)
    a.v("v_add_u32", 35, 35, 34)
    a.v("v_and_b32", 34, "3", 0)
    a.v("v_lshlrev_b32", 34, "3", 34)
    a.v("v_add_u32", vV[0], 35, 34)
    for t in range(1, 8):
        a.v("v_xor_b32", vV[t], str(t << 5), vV[0])
    a.salu(f"s_lshl_b32 s{sT2}, s{sWAVE}, 4")
    a.v("v_add_u32", 36, f"s{sT2}", 32)
    a.v("v_lshlrev_b32", 37, "4", 33)
    return 36, 37


def interleave(a, main, filler):
    n = len(main)
    k = 0
    for idx, m in enumerate(main):
        m()
        upto = (len(filler) * (idx + 1)) // n
        while k < upto:
            filler[k]()
            k += 1


def k_step(a, ctx, j, slot, filler=()):
    off = ensure_region(a, ctx, "K", slot)
    order = [(ds, kt) for ds in range(4) for kt in range(4)]

    def rd(n):
        ds, kt = order[n]
        a.mem(f"ds_read_b128 {vr(F[n % 8])}, v{vK[ds]} offset:{off + kt * 4096}", dst=F[n % 8], src=[vK[ds]])
    for n in range(8):
        rd(n)

    def mk(n):
        def f():
            ds, kt = order[n]
            a.waitcnt(lgkm=min(7, 15 - n))
            a.mfma(ST[4 * j + kt], F[n % 8], QF[ds], ST[4 * j + kt] if ds > 0 else None)
            if n + 8 < 16:
                rd(n + 8)
        return f
    interleave(a, [mk(n) for n in range(16)], list(filler))


def tr_step(a, ctx, slot, acc, bfr, first, rowsum=False, rs_first=False, filler=()):
    off = ensure_region(a, ctx, "V", slot)
    order = [(s, t) for s in range(2) for t in range(8)]
    DEPTH = 6

    def rd(n):
        s, t = order[n]
        fb = F[n % 8]
        a.mem(f"ds_read_b64_tr_b16 {vr(fb[0:2])}, v{vV[t]} offset:{off + s * 8192}", dst=fb[0:2], src=[vV[t]])
        a.mem(f"ds_read_b64_tr_b16 {vr(fb[2:4])}, v{vV[t]} offset:{off + s * 8192 + 4096}", dst=fb[2:4], src=[vV[t]])
    for n in range(DEPTH):
        rd(n)

    def mk(n):
        def f():
            s, t = order[n]
            if rowsum and t == 0:
                a.mfma(RS, ONES, bfr[s], None if (rs_first and s == 0) else RS)
            a.waitcnt(lgkm=2 * min(DEPTH - 1, 15 - n))
            a.mfma(acc[t], F[n % 8], bfr[s], None if (first and s == 0) else acc[t])
            if n + DEPTH < 16:
                rd(n + DEPTH)
        return f
    interleave(a, [mk(n) for n in range(16)], list(filler))


def max_ops(a, j, first):
    ops = []
    regs = [r for kt in range(4) for r in ST[4 * j + kt]]
    for p in range(0, 16, 2):
        if first and p == 0:
            ops.append(lambda x=regs[p], y=regs[p + 1]: a.v("v_max_f32", vM, x, y))
        else:
            ops.append(lambda x=regs[p], y=regs[p + 1]: a.v("v_max3_f32", vM, x, y, vM))
    return ops


def exp_ops(a, j):
    ops = []
    for s in range(2):
        base = SB + 8 * (2 * j + s)
        for r in range(8):
            ops.append(lambda x=base + r: a.v("v_fma_f32", x, x, f"s{sC}", f"-v{vM}"))
        for r in range(8):
            ops.append(lambda x=base + r: a.v("v_exp_f32", x, x, trans=True))
        for r in range(4):
            ops.append(lambda d=base + r, x=base + 2 * r: a.v("v_cvt_pk_bf16_f32", d, x, x + 1))
    return ops


def pfrag(ks):
    return R(SB + 8 * ks, 4)


def pack_T(a, acc, dst, scale=None):
    if scale is not None:
        for t in range(8):
            for r in acc[t]:
                a.v("v_mul_f32", r, r, scale)
    for ds in range(4):
        x, y = acc[2 * ds], acc[2 * ds + 1]
        d = dst[ds]
        a.v("v_cvt_pk_bf16_f32", d[0], x[0], x[1])
        a.v("v_cvt_pk_bf16_f32", d[1], x[2], x[3])
        a.v("v_cvt_pk_bf16_f32", d[2], y[0], y[1])
        a.v("v_cvt_pk_bf16_f32", d[3], y[2], y[3])
    for ds in range(4):
        d = dst[ds]
        a.permswap(32, d[0], d[2])
        a.permswap(32, d[1], d[3])
    for ds in range(4):
        d = dst[ds]
        a.permswap(16, d[0], d[2])
        a.permswap(16, d[1], d[3])


def finish_max(a):
    t = F[0][0]
    a.v("v_mov_b32", t, vM)
    a.permswap(32, vM, t)
    a.v("v_max_f32", vM, vM, t)
    a.v("v_mov_b32", t, vM)
    a.permswap(16, vM, t)
    a.v("v_max_f32", vM, vM, t)
    a.v("v_mul_f32", vM, f"s{sC}", vM)


def kernel_header(name):
    return f""".globl {name}
.p2align 8
.type {name},@function
{name}:
"""


def kernel_desc(name, vgpr=256):
    return f""".section .rodata,"a"
.p2align 6
.amdhsa_kernel {name}
  .amdhsa_next_free_vgpr {vgpr}
  .amdhsa_next_free_sgpr 102
  .amdhsa_accum_offset {vgpr}
  .amdhsa_group_segment_fixed_size 0
  .amdhsa_kernarg_size 104
  .amdhsa_user_sgpr_count 2
  .amdhsa_user_sgpr_kernarg_segment_ptr 1
  .amdhsa_system_sgpr_workgroup_id_x 1
.end_amdhsa_kernel
.text
"""


def gen_k1():
    a = Asm()
    common_prologue(a, 256, "k1_end")
    for it in range(2):
        a.salu(f"s_lshl_b32 s74, s{sB}, 5")
        a.salu(f"s_add_u32 s74, s74, s{sHH}")
        a.salu(f"s_add_u32 s74, s74, {16 * it}")
        a.salu(f"s_lshl_b32 s{sKV[it]}, s74, 17")
        a.salu(f"s_add_u32 s75, s{sHH}, {16 * it}")
        a.salu(f"s_lshl_b32 s{sW[it]}, s75, 8")
        a.salu(f"s_lshl_b32 s76, s{sBLK}, 3")
        a.salu(f"s_add_u32 s76, s76, s{sB}")
        a.salu(f"s_mul_i32 s76, s76, 917504")
        a.salu(f"s_add_u32 s{sOO[it]}, s76, s{sW[it]}")
    a.salu(f"s_mul_i32 s{sXO}, s{sB}, 114688")
    a.salu(f"s_mov_b32 s{sC}, {f32hex(CSCALE)}")

    steps = []
    for j in range(8):
        steps.append(("W", 0, j))
    g = 0
    for typ in "KV":
        for j in range(8):
            steps.append((typ, 0, j))
            if j % 2 == 1:
                steps.append(("W", 1, g))
                g += 1
    for typ in "KV":
        for j in range(8):
            steps.append((typ, 1, j))
    tiles = []
    for st in steps:
        if st[0] == "W":
            tiles.append(("W", S_WQ, sW[st[1]], 8192, 64 * st[2]))
        else:
            tiles.append(st)

    a.salu(f"s_cmp_eq_u32 s{sWAVE}, 7")
    a.salu("s_cbranch_scc1 k1_loader")

    ctx = Ctx()
    q, g16 = compute_setup(a)
    a.v("v_lshlrev_b32", vXO, "10", q)
    a.v("v_add_u32", vXO, vXO, g16)
    a.v("v_lshlrev_b32", vOO, "13", q)
    a.v("v_add_u32", vOO, vOO, g16)
    for r in ONES:
        a.v("v_mov_b32", r, "0x3f803f80")
    XALL = [R(SB + 4 * s, 4) for s in range(16)]
    for s in range(16):
        a.mem(f"buffer_load_dwordx4 {vr(XALL[s])}, v{vXO}, {srd(S_X)}, s{sXO} offen offset:{64 * s}", dst=XALL[s], src=[vXO])

    def load_xf(gidx):
        for s in range(2):
            a.mem(f"buffer_load_dwordx4 {vr(XF[s])}, v{vXO}, {srd(S_X)}, s{sXO} offen offset:{64 * (2 * gidx + s)}",
                  dst=XF[s], src=[vXO])
    load_xf(0)

    pending_max = None
    for si, st in enumerate(steps):
        slot = si % NSLOTS
        typ, it, j = st
        a.barrier()
        if typ == "W" and it == 0:
            a.waitcnt(vm=2 + 14 - 2 * j)
            tr_step(a, ctx, slot, GACC, [XALL[2 * j], XALL[2 * j + 1]], first=(j == 0))
            if j == 7:
                pack_T(a, GACC, QF)
        elif typ == "W":
            a.waitcnt(vm=0)
            fill = []
            if pending_max is not None:
                fill = pending_max
                pending_max = None
            tr_step(a, ctx, slot, GACC, XF, first=(j == 0), filler=fill)
            if j < 7:
                load_xf(j + 1)
        elif typ == "K":
            fill = pending_max or []
            k_step(a, ctx, j, slot, filler=fill)
            pending_max = max_ops(a, j, first=(j == 0))
        elif typ == "V":
            if j == 0:
                for op in (pending_max or []):
                    op()
                pending_max = None
                finish_max(a)
                for op in exp_ops(a, 0):
                    op()
            fill = exp_ops(a, j + 1) if j < 7 else []
            tr_step(a, ctx, slot, OACC, [pfrag(2 * j), pfrag(2 * j + 1)], first=(j == 0), rowsum=True,
                    rs_first=(j == 0), filler=fill)
            if j == 7:
                a.v("v_rcp_f32", vM, RS[0], trans=True)
                OP = [F[0], F[1], F[2], F[3]]
                pack_T(a, OACC, OP, scale=vM)
                for ds in range(4):
                    a.mem(f"buffer_store_dwordx4 {vr(OP[ds])}, v{vOO}, {srd(S_WS)}, s{sOO[it]} offen offset:{64 * ds}",
                          src=OP[ds] + [vOO], wide_store=True)
                a.nop(2)
        if si + 1 < len(steps) and steps[si + 1] == ("K", 1, 0):
            pack_T(a, GACC, QF)
    a.raw("s_endpgm")

    a.label("k1_loader")
    loader_setup(a, 8192)
    emit_loader(a, tiles)
    a.label("k1_end")
    a.raw("s_endpgm")
    return a.text()


def gen_k2():
    a = Asm()
    common_prologue(a, 256, "k2_end")
    a.salu("s_and_b32 s74, s2, 3")
    a.salu("s_lshl_b32 s75, s74, 19")
    a.salu(f"s_lshl_b32 s76, s{sM}, 8")
    a.salu(f"s_add_u32 s{sW[0]}, s75, s76")
    a.salu(f"s_add_u32 s{sW[1]}, s{sW[0]}, {2048 * 1024}")
    a.salu(f"s_lshl_b32 s76, s{sBLK}, 3")
    a.salu(f"s_add_u32 s76, s76, s{sB}")
    a.salu("s_mul_i32 s77, s76, 917504")
    a.salu("s_lshl_b32 s75, s74, 10")
    a.salu(f"s_add_u32 s{sOO[0]}, s77, s75")
    a.salu(f"s_add_u32 s{sOO[1]}, s{sOO[0]}, 4096")
    a.salu("s_lshl_b32 s75, s74, 4")
    a.salu("s_add_u32 s75, s75, s76")
    a.salu(f"s_mul_i32 s75, s75, {112 * 512 * 4}")
    a.salu(f"s_lshl_b32 s77, s{sM}, 9")
    a.salu("s_add_u32 s75, s75, s77")
    a.salu(f"s_add_u32 s{sXO}, s75, {WS_P_OFF}")
    tiles = [("W", S_WO, sW[h], 1024, 64 * j) for h in range(2) for j in range(8)]
    a.salu(f"s_cmp_eq_u32 s{sWAVE}, 7")
    a.salu("s_cbranch_scc1 k2_loader")
    ctx = Ctx()
    q, g16 = compute_setup(a, need_k=False)
    a.v("v_lshlrev_b32", vOO, "13", q)
    a.v("v_add_u32", vOO, vOO, g16)
    a.v("v_lshlrev_b32", vXO, "11", q)
    a.v("v_add_u32", vXO, vXO, g16)
    OALL = [R(SB + 4 * s, 4) for s in range(32)]
    for h in range(2):
        for s in range(16):
            a.mem(f"buffer_load_dwordx4 {vr(OALL[16 * h + s])}, v{vOO}, {srd(S_WS)}, s{sOO[h]} offen offset:{64 * s}",
                  dst=OALL[16 * h + s], src=[vOO])
    for si in range(16):
        a.barrier()
        a.waitcnt(vm=30 - 2 * si)
        tr_step(a, ctx, si % NSLOTS, GACC, [OALL[2 * si], OALL[2 * si + 1]], first=(si == 0))
    for t in range(8):
        a.mem(f"buffer_store_dwordx4 {vr(GACC[t])}, v{vXO}, {srd(S_WS)}, s{sXO} offen offset:{64 * t}",
              src=GACC[t] + [vXO], wide_store=True)
    a.raw("s_endpgm")
    a.label("k2_loader")
    loader_setup(a, 1024)
    emit_loader(a, tiles)
    a.label("k2_end")
    a.raw("s_endpgm")
    return a.text()


def gen_k3():
    a = Asm()
    a.salu("s_cmp_ge_u32 s2, 448")
    a.salu("s_cbranch_scc1 k3_end")
    a.salu("s_load_dwordx2 s[4:5], s[0:1], 80")
    a.salu("s_load_dwordx2 s[8:9], s[0:1], 96")
    a.salu("s_mov_b32 s6, 1835008")
    a.salu("s_mov_b32 s7, 0x20000")
    a.salu(f"s_mov_b32 s10, {WS_SIZE}")
    a.salu("s_mov_b32 s11, 0x20000")
    a.salu("s_lshl_b32 s3, s2, 8")
    a.v("v_add_u32", 1, "s3", 0)
    a.v("v_lshlrev_b32", 2, "5", 1)
    a.v("v_lshrrev_b32", 3, "6", 1)
    a.v("v_and_b32", 4, "63", 1)
    a.salu("s_movk_i32 s12, 896")
    a.raw("v_cmp_le_u32 vcc, 896, v3")
    a.nop(2)
    a.raw("v_cndmask_b32 v5, 0, 1, vcc")
    a.nop(2)
    a.v("v_mul_u32_u24", 6, "896", 5)
    a.v("v_sub_u32", 3, 3, 6)
    a.v("v_lshlrev_b32", 3, "11", 3)
    a.v("v_lshlrev_b32", 5, "10", 5)
    a.v("v_lshlrev_b32", 4, "4", 4)
    a.v("v_add3_u32", 3, 3, 4, 5)
    a.waitcnt(lgkm=0)
    PS = 16 * 112 * 512 * 4
    for kg in range(4):
        a.salu(f"s_mov_b32 s{13 + kg}, {WS_P_OFF + kg * PS}")
    for kg in range(4):
        a.mem(f"buffer_load_dwordx4 v[{8 + 8 * kg}:{11 + 8 * kg}], v2, s[8:11], s{13 + kg} offen", dst=R(8 + 8 * kg, 4), src=[2])
        a.mem(f"buffer_load_dwordx4 v[{12 + 8 * kg}:{15 + 8 * kg}], v2, s[8:11], s{13 + kg} offen offset:16", dst=R(12 + 8 * kg, 4), src=[2])
    a.waitcnt(vm=0)
    for e in range(8):
        a.v("v_add_f32", 8 + e, 8 + e, 16 + e)
        a.v("v_add_f32", 24 + e, 24 + e, 32 + e)
    for e in range(8):
        a.v("v_add_f32", 8 + e, 8 + e, 24 + e)
    for e in range(4):
        a.v("v_cvt_pk_bf16_f32", 40 + e, 8 + 2 * e, 9 + 2 * e)
    a.mem("buffer_store_dwordx4 v[40:43], v3, s[4:7], 0 offen", src=R(40, 4) + [3], wide_store=True)
    a.label("k3_end")
    a.raw("s_endpgm")
    return a.text()


def main():
    out = sys.argv[1]
    lds = NSLOTS * 16384
    s = "; generated by work/gen.py\n"
    s += f"; @launch kernel={KN} grid=(256,1,1) block=(512,1,1) lds={lds}\n"
    s += f"; @launch kernel=oproj_kernel grid=(256,1,1) block=(512,1,1) lds={lds}\n"
    s += "; @launch kernel=reduce_kernel grid=(448,1,1) block=(256,1,1) lds=0\n"
    s += '.amdgcn_target "amdgcn-amd-amdhsa--gfx950"\n.text\n'
    s += kernel_header(KN) + gen_k1() + kernel_desc(KN)
    s += kernel_header("oproj_kernel") + gen_k2() + kernel_desc("oproj_kernel")
    s += kernel_header("reduce_kernel") + gen_k3() + kernel_desc("reduce_kernel", 64)
    open(out, "w").write(s)


main()
```

```python
import sys, math, struct
from asmlib import Asm, R, vr

KN = "concat_heads__mha_block_cached__gqa_block_cached__near_ridge_kernel"

OPT = dict(nslots=8, D=4, nt=0, noload=0, nocompute=0, prof=0, noexp=0, nods=0, nowait=0)
for arg in sys.argv[2:]:
    k, v = arg.split("=")
    OPT[k] = int(v)

NSLOTS = OPT["nslots"]
LOOK = OPT["D"]

S_K, S_V, S_WQ, S_X, S_WS, S_WO, S_OUT = 4, 8, 12, 16, 20, 24, 28
sWAVE, sB, sBLK, sHH, sM = 32, 33, 34, 35, 62
sKV = [64, 65]
sW = [66, 67]
sXO = 68
sOO = [69, 70]
sT = 71
sC = 72
sT2 = 73


def srd(b):
    return f"s[{b}:{b + 3}]"


vXO, vOO, vM = 1, 2, 3
RS = R(4, 4)
vK = R(8, 4)
vV = R(12, 8)
ONES = R(20, 4)
XF = [R(24, 4), R(28, 4)]
F = [R(32 + 4 * i, 4) for i in range(8)]
GACC = [R(64 + 4 * i, 4) for i in range(8)]
OACC = [R(96 + 4 * i, 4) for i in range(8)]
QF = [R(96 + 4 * i, 4) for i in range(4)]
SB = 128
ST = [R(SB + 4 * i, 4) for i in range(32)]

CSCALE = (128 ** -0.5) * math.log2(math.e)


def f32hex(x):
    return "0x%08x" % struct.unpack("<I", struct.pack("<f", x))[0]


WS_O_BYTES = 2 * 8 * 112 * 4096 * 2
WS_P_OFF = 16 * 1024 * 1024
WS_SIZE = 268435456


def common_prologue(a, nwg, endlabel):
    a.salu(f"s_cmp_ge_u32 s2, {nwg}")
    a.salu(f"s_cbranch_scc1 {endlabel}")
    a.salu("s_load_dwordx8 s[36:43], s[0:1], 0")
    a.salu("s_load_dwordx8 s[44:51], s[0:1], 32")
    a.salu("s_load_dwordx8 s[52:59], s[0:1], 64")
    a.salu("s_load_dwordx2 s[60:61], s[0:1], 96")
    a.v("v_lshrrev_b32", 1, "6", 0)
    a.readfirstlane(sWAVE, 1)
    a.v("v_and_b32", 0, "63", 0)
    a.salu("s_and_b32 s74, s2, 7")
    a.salu("s_lshr_b32 s75, s2, 3")
    a.salu(f"s_and_b32 s{sB}, s75, 7")
    a.salu(f"s_lshr_b32 s{sM}, s75, 3")
    a.salu("s_lshl_b32 s76, s74, 2")
    a.salu(f"s_add_u32 s76, s76, s{sM}")
    a.salu(f"s_lshr_b32 s{sBLK}, s76, 4")
    a.salu(f"s_and_b32 s{sHH}, s76, 15")
    a.waitcnt(lgkm=0)
    a.salu(f"s_cmp_eq_u32 s{sBLK}, 0")
    for dst, pa, pb, size in ((S_X, 36, 46, 917504), (S_K, 38, 48, 33554432), (S_V, 40, 50, 33554432),
                              (S_WQ, 42, 52, 4194304), (S_WO, 44, 54, 4194304)):
        a.salu(f"s_cselect_b32 s{dst}, s{pa}, s{pb}")
        a.salu(f"s_cselect_b32 s{dst + 1}, s{pa + 1}, s{pb + 1}")
        a.salu(f"s_mov_b32 s{dst + 2}, {size}")
        a.salu(f"s_mov_b32 s{dst + 3}, 0x20000")
    for dst, p, size in ((S_WS, 60, WS_SIZE), (S_OUT, 56, 1835008)):
        a.salu(f"s_mov_b32 s{dst}, s{p}")
        a.salu(f"s_mov_b32 s{dst + 1}, s{p + 1}")
        a.salu(f"s_mov_b32 s{dst + 2}, {size}")
        a.salu(f"s_mov_b32 s{dst + 3}, 0x20000")


LvE, LvO, LvWE, LvWO = 2, 3, 4, 5


def loader_setup(a, wstride):
    a.v("v_lshrrev_b32", 6, "4", 0)
    a.v("v_and_b32", 7, "15", 0)
    a.v("v_lshlrev_b32", 8, "1", 6)
    a.v("v_xor_b32", 9, 7, 8)
    a.v("v_xor_b32", 10, "8", 9)
    a.v("v_lshlrev_b32", 9, "4", 9)
    a.v("v_lshlrev_b32", 10, "4", 10)
    a.v("v_lshlrev_b32", 11, "8", 6)
    a.v("v_add_u32", LvE, 9, 11)
    a.v("v_add_u32", LvO, 10, 11)
    a.v("v_mul_u32_u24", 11, str(wstride), 6)
    a.v("v_add_u32", LvWE, 9, 11)
    a.v("v_add_u32", LvWO, 10, 11)


def emit_tile_load(a, tile, slot):
    typ = tile[0]
    if OPT["noload"]:
        return
    nt = " nt" if OPT["nt"] else ""
    if typ in "KV":
        _, it, j = tile
        sd = srd(S_K if typ == "K" else S_V)
        for q in range(4):
            a.salu(f"s_mov_b32 m0, {slot * 16384 + q * 4096}", m0=True)
            a.salu(f"s_add_u32 s{sT}, s{sKV[it]}, {j * 16384 + q * 4096}")
            for ii in range(4):
                i = q * 4 + ii
                a.mem(f"buffer_load_dwordx4 v{LvE if i % 2 == 0 else LvO}, {sd}, s{sT} offen offset:{1024 * ii}{nt} lds",
                      src=[LvE, LvO], ldsdma=True)
    else:
        _, sd, sbase, rs, row0 = tile
        for i in range(16):
            if i % 4 == 0:
                a.salu(f"s_mov_b32 m0, {slot * 16384 + (i // 4) * 4096}", m0=True)
            grow = row0 + 32 * (i >> 3) + 8 * (i & 3) + 4 * ((i >> 2) & 1)
            a.salu(f"s_add_u32 s{sT}, s{sbase}, {grow * rs - 1024 * (i & 3)}")
            a.mem(f"buffer_load_dwordx4 v{LvWE if i % 2 == 0 else LvWO}, {srd(sd)}, s{sT} offen offset:{1024 * (i & 3)} lds",
                  src=[LvWE, LvWO], ldsdma=True)


def emit_loader(a, tiles):
    n = len(tiles)
    for t in range(min(LOOK, n)):
        emit_tile_load(a, tiles[t], t % NSLOTS)
    for s in range(n):
        issued = min(n, s + LOOK)
        after = issued - (s + 1)
        a.waitcnt(vm=min(63, 16 * after))
        a.barrier()
        if s + LOOK < n:
            emit_tile_load(a, tiles[s + LOOK], (s + LOOK) % NSLOTS)


class Ctx:
    def __init__(self):
        self.reg = {"K": 0, "V": 0}


def ensure_region(a, ctx, typ, slot):
    want = slot // 4
    cur = ctx.reg[typ]
    if want != cur:
        regs = vK if typ == "K" else vV
        delta = (want - cur) * 65536
        for r in regs:
            a.v("v_add_u32", r, str(delta) if delta > 0 else hex(delta & 0xffffffff), r)
        ctx.reg[typ] = want
    return (slot % 4) * 16384


def compute_setup(a, need_k=True):
    a.v("v_and_b32", 32, "15", 0)
    a.v("v_lshrrev_b32", 33, "4", 0)
    if need_k:
        a.v("v_and_b32", 34, "7", 32)
        a.v("v_lshlrev_b32", 34, "1", 34)
        a.v("v_xor_b32", 34, 33, 34)
        a.v("v_lshlrev_b32", 34, "4", 34)
        a.v("v_lshlrev_b32", 35, "8", 32)
        a.v("v_add_u32", vK[0], 34, 35)
        for ds in range(1, 4):
            a.v("v_xor_b32", vK[ds], str(ds << 6), vK[0])
    a.v("v_lshrrev_b32", 34, "2", 0)
    a.v("v_lshlrev_b32", 35, "8", 34)
    a.v("v_and_b32", 34, "7", 34)
    a.v("v_lshlrev_b32", 34, "5", 34)
    a.v("v_add_u32", 35, 35, 34)
    a.v("v_and_b32", 34, "3", 0)
    a.v("v_lshlrev_b32", 34, "3", 34)
    a.v("v_add_u32", vV[0], 35, 34)
    for t in range(1, 8):
        a.v("v_xor_b32", vV[t], str(t << 5), vV[0])
    a.salu(f"s_lshl_b32 s{sT2}, s{sWAVE}, 4")
    a.v("v_add_u32", 36, f"s{sT2}", 32)
    a.v("v_lshlrev_b32", 37, "4", 33)
    return 36, 37


def interleave(a, main, filler):
    n = len(main)
    k = 0
    for idx, m in enumerate(main):
        m()
        upto = (len(filler) * (idx + 1)) // n
        while k < upto:
            filler[k]()
            k += 1


def k_step(a, ctx, j, slot, filler=()):
    off = ensure_region(a, ctx, "K", slot)
    order = [(ds, kt) for ds in range(4) for kt in range(4)]

    def rd(n):
        if OPT["nods"]:
            return
        ds, kt = order[n]
        a.mem(f"ds_read_b128 {vr(F[n % 8])}, v{vK[ds]} offset:{off + kt * 4096}", dst=F[n % 8], src=[vK[ds]])
    for n in range(8):
        rd(n)

    def mk(n):
        def f():
            ds, kt = order[n]
            if not OPT["nowait"]:
                a.waitcnt(lgkm=min(7, 15 - n))
            a.mfma(ST[4 * j + kt], F[n % 8], QF[ds], ST[4 * j + kt] if ds > 0 else None)
            if n + 8 < 16:
                rd(n + 8)
        return f
    interleave(a, [mk(n) for n in range(16)], list(filler))


def tr_step(a, ctx, slot, acc, bfr, first, rowsum=False, rs_first=False, filler=()):
    off = ensure_region(a, ctx, "V", slot)
    order = [(s, t) for s in range(2) for t in range(8)]
    DEPTH = 6

    def rd(n):
        if OPT["nods"]:
            return
        s, t = order[n]
        fb = F[n % 8]
        a.mem(f"ds_read_b64_tr_b16 {vr(fb[0:2])}, v{vV[t]} offset:{off + s * 8192}", dst=fb[0:2], src=[vV[t]])
        a.mem(f"ds_read_b64_tr_b16 {vr(fb[2:4])}, v{vV[t]} offset:{off + s * 8192 + 4096}", dst=fb[2:4], src=[vV[t]])
    for n in range(DEPTH):
        rd(n)

    def mk(n):
        def f():
            s, t = order[n]
            if rowsum and t == 0:
                a.mfma(RS, ONES, bfr[s], None if (rs_first and s == 0) else RS)
            if not OPT["nowait"]:
                a.waitcnt(lgkm=2 * min(DEPTH - 1, 15 - n))
            a.mfma(acc[t], F[n % 8], bfr[s], None if (first and s == 0) else acc[t])
            if n + DEPTH < 16:
                rd(n + DEPTH)
        return f
    interleave(a, [mk(n) for n in range(16)], list(filler))


def max_ops(a, j, first):
    ops = []
    regs = [r for kt in range(4) for r in ST[4 * j + kt]]
    for p in range(0, 16, 2):
        if first and p == 0:
            ops.append(lambda x=regs[p], y=regs[p + 1]: a.v("v_max_f32", vM, x, y))
        else:
            ops.append(lambda x=regs[p], y=regs[p + 1]: a.v("v_max3_f32", vM, x, y, vM))
    return ops


def exp_ops(a, j):
    ops = []
    if OPT["noexp"]:
        return ops
    for s in range(2):
        base = SB + 8 * (2 * j + s)
        for r in range(8):
            ops.append(lambda x=base + r: a.v("v_fma_f32", x, x, f"s{sC}", f"-v{vM}"))
        for r in range(8):
            ops.append(lambda x=base + r: a.v("v_exp_f32", x, x, trans=True))
        for r in range(4):
            ops.append(lambda d=base + r, x=base + 2 * r: a.v("v_cvt_pk_bf16_f32", d, x, x + 1))
    return ops


def pfrag(ks):
    return R(SB + 8 * ks, 4)


def pack_T(a, acc, dst, scale=None):
    if scale is not None:
        for t in range(8):
            for r in acc[t]:
                a.v("v_mul_f32", r, r, scale)
    for ds in range(4):
        x, y = acc[2 * ds], acc[2 * ds + 1]
        d = dst[ds]
        a.v("v_cvt_pk_bf16_f32", d[0], x[0], x[1])
        a.v("v_cvt_pk_bf16_f32", d[1], x[2], x[3])
        a.v("v_cvt_pk_bf16_f32", d[2], y[0], y[1])
        a.v("v_cvt_pk_bf16_f32", d[3], y[2], y[3])
    for ds in range(4):
        d = dst[ds]
        a.permswap(32, d[0], d[2])
        a.permswap(32, d[1], d[3])
    for ds in range(4):
        d = dst[ds]
        a.permswap(16, d[0], d[2])
        a.permswap(16, d[1], d[3])


def finish_max(a):
    t = F[0][0]
    a.v("v_mov_b32", t, vM)
    a.permswap(32, vM, t)
    a.v("v_max_f32", vM, vM, t)
    a.v("v_mov_b32", t, vM)
    a.permswap(16, vM, t)
    a.v("v_max_f32", vM, vM, t)
    a.v("v_mul_f32", vM, f"s{sC}", vM)


def stamp(a, idx, real=None):
    a.raw("s_memtime s[78:79]")
    a.waitcnt(lgkm=0)
    a.raw(f"v_writelane_b32 v0, s78, {idx}")
    if real is not None:
        a.raw("s_memrealtime s[78:79]")
        a.waitcnt(lgkm=0)
        a.raw(f"v_writelane_b32 v0, s78, {real}")


def prof_store(a):
    a.raw("v_writelane_b32 v0, s82, 61")
    a.salu("s_lshl_b32 s80, s2, 3")
    a.salu(f"s_add_u32 s80, s80, s{sWAVE}")
    a.salu("s_lshl_b32 s80, s80, 8")
    a.salu(f"s_add_u32 s80, s80, {32 * 1024 * 1024}")
    a.raw("v_mbcnt_lo_u32_b32 v1, -1, 0")
    a.raw("v_mbcnt_hi_u32_b32 v1, -1, v1")
    a.raw("v_lshlrev_b32 v1, 2, v1")
    a.nop(2)
    a.raw(f"buffer_store_dword v0, v1, {srd(S_WS)}, s80 offen")


def kernel_header(name):
    return f""".globl {name}
.p2align 8
.type {name},@function
{name}:
"""


def kernel_desc(name, vgpr=256):
    return f""".section .rodata,"a"
.p2align 6
.amdhsa_kernel {name}
  .amdhsa_next_free_vgpr {vgpr}
  .amdhsa_next_free_sgpr 102
  .amdhsa_accum_offset {vgpr}
  .amdhsa_group_segment_fixed_size 0
  .amdhsa_kernarg_size 104
  .amdhsa_user_sgpr_count 2
  .amdhsa_user_sgpr_kernarg_segment_ptr 1
  .amdhsa_system_sgpr_workgroup_id_x 1
.end_amdhsa_kernel
.text
"""


def gen_k1():
    a = Asm()
    if OPT["prof"]:
        a.raw("s_memrealtime s[82:83]")
    common_prologue(a, 256, "k1_end")
    for it in range(2):
        a.salu(f"s_lshl_b32 s74, s{sB}, 5")
        a.salu(f"s_add_u32 s74, s74, s{sHH}")
        a.salu(f"s_add_u32 s74, s74, {16 * it}")
        a.salu(f"s_lshl_b32 s{sKV[it]}, s74, 17")
        a.salu(f"s_add_u32 s75, s{sHH}, {16 * it}")
        a.salu(f"s_lshl_b32 s{sW[it]}, s75, 8")
        a.salu(f"s_lshl_b32 s76, s{sBLK}, 3")
        a.salu(f"s_add_u32 s76, s76, s{sB}")
        a.salu(f"s_mul_i32 s76, s76, 917504")
        a.salu(f"s_add_u32 s{sOO[it]}, s76, s{sW[it]}")
    a.salu(f"s_mul_i32 s{sXO}, s{sB}, 114688")
    a.salu(f"s_mov_b32 s{sC}, {f32hex(CSCALE)}")

    steps = []
    for j in range(8):
        steps.append(("W", 0, j))
    g = 0
    for typ in "KV":
        for j in range(8):
            steps.append((typ, 0, j))
            if j % 2 == 1:
                steps.append(("W", 1, g))
                g += 1
    for typ in "KV":
        for j in range(8):
            steps.append((typ, 1, j))
    tiles = []
    for st in steps:
        if st[0] == "W":
            tiles.append(("W", S_WQ, sW[st[1]], 8192, 64 * st[2]))
        else:
            tiles.append(st)

    a.salu(f"s_cmp_eq_u32 s{sWAVE}, 7")
    a.salu("s_cbranch_scc1 k1_loader")

    ctx = Ctx()
    q, g16 = compute_setup(a)
    a.v("v_lshlrev_b32", vXO, "10", q)
    a.v("v_add_u32", vXO, vXO, g16)
    a.v("v_lshlrev_b32", vOO, "13", q)
    a.v("v_add_u32", vOO, vOO, g16)
    for r in ONES:
        a.v("v_mov_b32", r, "0x3f803f80")
    XALL = [R(SB + 4 * s, 4) for s in range(16)]
    for s in range(16):
        a.mem(f"buffer_load_dwordx4 {vr(XALL[s])}, v{vXO}, {srd(S_X)}, s{sXO} offen offset:{64 * s}", dst=XALL[s], src=[vXO])

    def load_xf(gidx):
        for s in range(2):
            a.mem(f"buffer_load_dwordx4 {vr(XF[s])}, v{vXO}, {srd(S_X)}, s{sXO} offen offset:{64 * (2 * gidx + s)}",
                  dst=XF[s], src=[vXO])
    load_xf(0)

    pending_max = None
    for si, st in enumerate(steps):
        slot = si % NSLOTS
        typ, it, j = st
        a.barrier()
        if OPT["prof"]:
            stamp(a, si, 62 if si == 0 else None)
        if OPT["nocompute"]:
            continue
        if typ == "W" and it == 0:
            a.waitcnt(vm=2 + 14 - 2 * j)
            tr_step(a, ctx, slot, GACC, [XALL[2 * j], XALL[2 * j + 1]], first=(j == 0))
            if j == 7:
                pack_T(a, GACC, QF)
        elif typ == "W":
            a.waitcnt(vm=0)
            fill = []
            if pending_max is not None:
                fill = pending_max
                pending_max = None
            tr_step(a, ctx, slot, GACC, XF, first=(j == 0), filler=fill)
            if j < 7:
                load_xf(j + 1)
        elif typ == "K":
            fill = pending_max or []
            k_step(a, ctx, j, slot, filler=fill)
            pending_max = max_ops(a, j, first=(j == 0))
        elif typ == "V":
            if j == 0:
                for op in (pending_max or []):
                    op()
                pending_max = None
                finish_max(a)
                for op in exp_ops(a, 0):
                    op()
            fill = exp_ops(a, j + 1) if j < 7 else []
            tr_step(a, ctx, slot, OACC, [pfrag(2 * j), pfrag(2 * j + 1)], first=(j == 0), rowsum=True,
                    rs_first=(j == 0), filler=fill)
            if j == 7:
                a.v("v_rcp_f32", vM, RS[0], trans=True)
                OP = [F[0], F[1], F[2], F[3]]
                pack_T(a, OACC, OP, scale=vM)
                for ds in range(4):
                    a.mem(f"buffer_store_dwordx4 {vr(OP[ds])}, v{vOO}, {srd(S_WS)}, s{sOO[it]} offen offset:{64 * ds}",
                          src=OP[ds] + [vOO], wide_store=True)
                a.nop(2)
        if si + 1 < len(steps) and steps[si + 1] == ("K", 1, 0):
            pack_T(a, GACC, QF)
    if OPT["prof"]:
        stamp(a, len(steps), 63)
        prof_store(a)
    a.raw("s_endpgm")

    a.label("k1_loader")
    loader_setup(a, 8192)
    emit_loader(a, tiles)
    a.label("k1_end")
    a.raw("s_endpgm")
    return a.text()


def gen_k2():
    a = Asm()
    common_prologue(a, 256, "k2_end")
    a.salu("s_and_b32 s74, s2, 3")
    a.salu("s_lshl_b32 s75, s74, 19")
    a.salu(f"s_lshl_b32 s76, s{sM}, 8")
    a.salu(f"s_add_u32 s{sW[0]}, s75, s76")
    a.salu(f"s_add_u32 s{sW[1]}, s{sW[0]}, {2048 * 1024}")
    a.salu(f"s_lshl_b32 s76, s{sBLK}, 3")
    a.salu(f"s_add_u32 s76, s76, s{sB}")
    a.salu("s_mul_i32 s77, s76, 917504")
    a.salu("s_lshl_b32 s75, s74, 10")
    a.salu(f"s_add_u32 s{sOO[0]}, s77, s75")
    a.salu(f"s_add_u32 s{sOO[1]}, s{sOO[0]}, 4096")
    a.salu("s_lshl_b32 s75, s74, 4")
    a.salu("s_add_u32 s75, s75, s76")
    a.salu(f"s_mul_i32 s75, s75, {112 * 512 * 4}")
    a.salu(f"s_lshl_b32 s77, s{sM}, 9")
    a.salu("s_add_u32 s75, s75, s77")
    a.salu(f"s_add_u32 s{sXO}, s75, {WS_P_OFF}")
    tiles = [("W", S_WO, sW[h], 1024, 64 * j) for h in range(2) for j in range(8)]
    a.salu(f"s_cmp_eq_u32 s{sWAVE}, 7")
    a.salu("s_cbranch_scc1 k2_loader")
    ctx = Ctx()
    q, g16 = compute_setup(a, need_k=False)
    a.v("v_lshlrev_b32", vOO, "13", q)
    a.v("v_add_u32", vOO, vOO, g16)
    a.v("v_lshlrev_b32", vXO, "11", q)
    a.v("v_add_u32", vXO, vXO, g16)
    OALL = [R(SB + 4 * s, 4) for s in range(32)]
    for h in range(2):
        for s in range(16):
            a.mem(f"buffer_load_dwordx4 {vr(OALL[16 * h + s])}, v{vOO}, {srd(S_WS)}, s{sOO[h]} offen offset:{64 * s}",
                  dst=OALL[16 * h + s], src=[vOO])
    for si in range(16):
        a.barrier()
        a.waitcnt(vm=30 - 2 * si)
        tr_step(a, ctx, si % NSLOTS, GACC, [OALL[2 * si], OALL[2 * si + 1]], first=(si == 0))
    for t in range(8):
        a.mem(f"buffer_store_dwordx4 {vr(GACC[t])}, v{vXO}, {srd(S_WS)}, s{sXO} offen offset:{64 * t}",
              src=GACC[t] + [vXO], wide_store=True)
    a.raw("s_endpgm")
    a.label("k2_loader")
    loader_setup(a, 1024)
    emit_loader(a, tiles)
    a.label("k2_end")
    a.raw("s_endpgm")
    return a.text()


def gen_k3():
    a = Asm()
    a.salu("s_cmp_ge_u32 s2, 448")
    a.salu("s_cbranch_scc1 k3_end")
    a.salu("s_load_dwordx2 s[4:5], s[0:1], 80")
    a.salu("s_load_dwordx2 s[8:9], s[0:1], 96")
    a.salu("s_mov_b32 s6, 1835008")
    a.salu("s_mov_b32 s7, 0x20000")
    a.salu(f"s_mov_b32 s10, {WS_SIZE}")
    a.salu("s_mov_b32 s11, 0x20000")
    a.salu("s_lshl_b32 s3, s2, 8")
    a.v("v_add_u32", 1, "s3", 0)
    a.v("v_lshlrev_b32", 2, "5", 1)
    a.v("v_lshrrev_b32", 3, "6", 1)
    a.v("v_and_b32", 4, "63", 1)
    a.salu("s_movk_i32 s12, 896")
    a.raw("v_cmp_le_u32 vcc, 896, v3")
    a.nop(2)
    a.raw("v_cndmask_b32 v5, 0, 1, vcc")
    a.nop(2)
    a.v("v_mul_u32_u24", 6, "896", 5)
    a.v("v_sub_u32", 3, 3, 6)
    a.v("v_lshlrev_b32", 3, "11", 3)
    a.v("v_lshlrev_b32", 5, "10", 5)
    a.v("v_lshlrev_b32", 4, "4", 4)
    a.v("v_add3_u32", 3, 3, 4, 5)
    a.waitcnt(lgkm=0)
    PS = 16 * 112 * 512 * 4
    for kg in range(4):
        a.salu(f"s_mov_b32 s{13 + kg}, {WS_P_OFF + kg * PS}")
    for kg in range(4):
        a.mem(f"buffer_load_dwordx4 v[{8 + 8 * kg}:{11 + 8 * kg}], v2, s[8:11], s{13 + kg} offen", dst=R(8 + 8 * kg, 4), src=[2])
        a.mem(f"buffer_load_dwordx4 v[{12 + 8 * kg}:{15 + 8 * kg}], v2, s[8:11], s{13 + kg} offen offset:16", dst=R(12 + 8 * kg, 4), src=[2])
    a.waitcnt(vm=0)
    for e in range(8):
        a.v("v_add_f32", 8 + e, 8 + e, 16 + e)
        a.v("v_add_f32", 24 + e, 24 + e, 32 + e)
    for e in range(8):
        a.v("v_add_f32", 8 + e, 8 + e, 24 + e)
    for e in range(4):
        a.v("v_cvt_pk_bf16_f32", 40 + e, 8 + 2 * e, 9 + 2 * e)
    a.mem("buffer_store_dwordx4 v[40:43], v3, s[4:7], 0 offen", src=R(40, 4) + [3], wide_store=True)
    a.label("k3_end")
    a.raw("s_endpgm")
    return a.text()


def main():
    out = sys.argv[1]
    lds = NSLOTS * 16384
    s = "; generated by work/gen.py\n"
    s += f"; @launch kernel={KN} grid=(256,1,1) block=(512,1,1) lds={lds}\n"
    s += f"; @launch kernel=oproj_kernel grid=(256,1,1) block=(512,1,1) lds={lds}\n"
    s += "; @launch kernel=reduce_kernel grid=(448,1,1) block=(256,1,1) lds=0\n"
    s += '.amdgcn_target "amdgcn-amd-amdhsa--gfx950"\n.text\n'
    s += kernel_header(KN) + gen_k1() + kernel_desc(KN)
    s += kernel_header("oproj_kernel") + gen_k2() + kernel_desc("oproj_kernel")
    s += kernel_header("reduce_kernel") + gen_k3() + kernel_desc("reduce_kernel", 64)
    open(out, "w").write(s)


main()
```
